```python
import torch

def _softmax(x, axis=-1):
    return torch.softmax(x, dim=axis)

def _gelu(x):
    return torch.nn.functional.gelu(x, approximate='tanh')

def _silu(x):
    return torch.nn.functional.silu(x)

def _sigmoid(x):
    return torch.sigmoid(x)

def _layernorm(x, axis=-1, eps=1e-05):
    m = x.mean(dim=axis, keepdim=True)
    v = x.var(dim=axis, keepdim=True, unbiased=False)
    return (x - m) / torch.sqrt(v + eps)

def _scatter_add(tgt, idx, src, axis=0):
    return tgt.clone().index_add_(axis, idx, src)

def _segment_sum(src, seg, n):
    out = torch.zeros((n,) + src.shape[1:], dtype=src.dtype)
    return out.index_add_(0, seg, src)

def _pad(x, pw):
    flat = tuple((v for pair in reversed(pw) for v in pair))
    return torch.nn.functional.pad(x, flat)
kernel_name = 'adaLN_cond__ssm_conv_s4d__glu_gated_geglu__prompt'

def setup_inputs():

    _w = lambda a: (lambda t: t.to(torch.bfloat16) if t.is_floating_point() else t)(torch.as_tensor(a))

    def _A_setup():
        Bsz, L, D, N = (1, 2048, 512, 128)
        return {'u': _w((lambda *s: torch.randn(*s, dtype=torch.bfloat16) * 0.05)(Bsz, L, D)), 'log_A_real': _w((lambda *s: torch.randn(*s, dtype=torch.bfloat16) * 3.2)(D, N) * 0.5), 'A_imag': _w((lambda *s: torch.randn(*s, dtype=torch.bfloat16) * 0.1)(D, N) * 3.14), 'C_real': _w((lambda *s: torch.randn(*s, dtype=torch.bfloat16) * 0.2)(D, N) / N ** 0.5), 'C_imag': _w((lambda *s: torch.randn(*s, dtype=torch.bfloat16) * 0.2)(D, N) / N ** 0.5), 'log_dt': _w((lambda *s: torch.randn(*s, dtype=torch.bfloat16) * 0.1)(D) * 0.5 - 4.0), 'D_skip': _w((lambda *s: torch.randn(*s, dtype=torch.bfloat16) * 0.1)(D))}
    _A_in = _A_setup()

    def _B_setup():
        B, S, Dm, Df = (1, 2048, 512, 1792)
        return {'x': _w((lambda *s: torch.randn(*s, dtype=torch.bfloat16) * 0.05)(B, S, Dm)), 'w_gate': _w((lambda *s: torch.randn(*s, dtype=torch.bfloat16) * 1.6)(Dm, Df) * Dm ** (-0.5)), 'w_up': _w((lambda *s: torch.randn(*s, dtype=torch.bfloat16) * 1.6)(Dm, Df) * Dm ** (-0.5)), 'w_down': _w((lambda *s: torch.randn(*s, dtype=torch.bfloat16) * 1.6)(Df, Dm) * Df ** (-0.5))}
    _B_in = _B_setup()
    return {'A_u': _A_in['u'], 'A_log_A_real': _A_in['log_A_real'], 'A_A_imag': _A_in['A_imag'], 'A_C_real': _A_in['C_real'], 'A_C_imag': _A_in['C_imag'], 'A_log_dt': _A_in['log_dt'], 'A_D_skip': _A_in['D_skip'], 'B_x': _B_in['x'], 'B_w_gate': _B_in['w_gate'], 'B_w_up': _B_in['w_up'], 'B_w_down': _B_in['w_down'], 'c': _w((lambda *s: torch.randn(*s, dtype=torch.bfloat16) * 0.2)(1, 512) * 8.0), 'w_mod': _w((lambda *s: torch.randn(*s, dtype=torch.bfloat16) * 0.2)(512, 6 * 512) * 512 ** (-0.5) * 8.0)}

def reference(A_u, A_log_A_real, A_A_imag, A_C_real, A_C_imag, A_log_dt, A_D_skip, B_x, B_w_gate, B_w_up, B_w_down, c, w_mod):

    def _A_ref(u, log_A_real, A_imag, C_real, C_imag, log_dt, D_skip):
        L = u.shape[1]
        dt = torch.exp(log_dt)
        A = -torch.exp(log_A_real) + 1j * A_imag
        C = (C_real + 1j * C_imag) * dt[:, None]
        pos = (lambda x, dt: x.to(dt))(torch.arange(L), log_dt.dtype)
        P = torch.exp((A * dt[:, None])[:, :, None] * pos[None, None, :])
        K = 2.0 * torch.einsum('dn,dnl->dl', C, P).real
        L2 = 2 * L
        u_t = (lambda x, *d: x.permute(*d))(u, 0, 2, 1)
        Kf = (lambda x, *a, **k: torch.fft.rfft(x.float(), *a, **k))(K, L2)
        Uf = (lambda x, *a, **k: torch.fft.rfft(x.float(), *a, **k))(u_t, L2)
        y = (lambda x, *a, **k: torch.fft.irfft(x, *a, **k).to(torch.bfloat16))(Uf * Kf[None, :, :], L2)[:, :, :L]
        y = (lambda x, *d: x.permute(*d))(y, 0, 2, 1)
        return y + u * D_skip[None, None, :]

    def _B_ref(x, w_gate, w_up, w_down):
        g = torch.einsum('bsd,df->bsf', x, w_gate)
        u = torch.einsum('bsd,df->bsf', x, w_up)
        h = _gelu(g) * u
        return torch.einsum('bsf,fd->bsd', h, w_down)
    x = A_u
    mod = (_silu(c) @ w_mod).reshape(c.shape[0], 6, 1, -1)
    sa, ca, ga, sb, cb, gb = (mod[:, 0].clone(), mod[:, 1].clone(), mod[:, 2].clone(), mod[:, 3].clone(), mod[:, 4].clone(), mod[:, 5].clone())
    h = _layernorm(x, axis=-1) * (1 + ca) + sa
    x = x + ga * _A_ref(h, A_log_A_real, A_A_imag, A_C_real, A_C_imag, A_log_dt, A_D_skip)
    h = _layernorm(x, axis=-1) * (1 + cb) + sb
    x = x + gb * _B_ref(h, B_w_gate, B_w_up, B_w_down)
    return x
```

```python
import re

TRANS = ("v_exp_f32","v_log_f32","v_rcp_f32","v_rsq_f32","v_sqrt_f32","v_sin_f32","v_cos_f32","v_rcp_iflag_f32")
_reg_re = re.compile(r'(-|abs\(|\|)?\b([vsa])(\d+)\b|\b([vsa])\[(\d+):(\d+)\]|\b(vcc|exec|m0|scc)\b')

def regs_of(op):
    out=set()
    for m in re.finditer(r'\b([vsa])\[(\d+):(\d+)\]|\b([vsa])(\d+)\b|\b(vcc_lo|vcc_hi|vcc|exec|m0)\b', op):
        if m.group(1):
            for i in range(int(m.group(2)), int(m.group(3))+1): out.add(m.group(1)+str(i))
        elif m.group(4): out.add(m.group(4)+m.group(5))
        else:
            g=m.group(6)
            out.add('vcc' if g.startswith('vcc') else g)
    return out

class Ins:
    __slots__=("text","op","kind","rd","wr","ws","passes","srcC","srcAB","dpp","label","target","storedata","lanesel")
    def __init__(self,text):
        self.text=text; self.label=None; self.target=None
        t=text.split(';')[0].strip()
        self.rd=set(); self.wr=set(); self.ws=1; self.passes=0; self.srcC=set(); self.srcAB=set(); self.dpp=False; self.storedata=set(); self.lanesel=set()
        if t.endswith(':'):
            self.kind='label'; self.label=t[:-1]; self.op=''; self.ws=0; return
        if not t or t.startswith('.'):
            self.kind='dir'; self.op=''; self.ws=0; return
        parts=t.split(None,1); op=parts[0]; self.op=op
        rest=parts[1] if len(parts)>1 else ''
        ops=[]; depth=0; cur=''
        for ch in rest:
            if ch in '[(': depth+=1
            if ch in '])': depth-=1
            if ch==',' and depth==0: ops.append(cur.strip()); cur=''
            else: cur+=ch
        if cur.strip(): ops.append(cur.strip())
        mods=''
        if ops:
            l=ops[-1].split(None,1)
            if len(l)>1 and not l[0].endswith(','):
                ops[-1]=l[0]; mods=l[1]
        R=[regs_of(o) for o in ops]
        allr=set().union(*R) if R else set()
        if op=='s_nop': self.kind='salu'; self.ws=int(ops[0],0)+1; return
        if op.startswith('v_mfma'):
            self.kind='mfma'; self.passes = 8 if '32x32x16' in op else 4 if '16x16x32' in op else 16
            self.wr=R[0]; self.srcAB=R[1]|R[2]; self.srcC=R[3] if len(R)>3 else set(); self.rd=self.srcAB|self.srcC; return
        if op.startswith('v_'):
            self.kind='valu'
            self.dpp = any(k in mods for k in ('row_','quad_perm','wave_','row_bcast'))
            if op.startswith('v_cmp'):
                self.wr=R[0]; self.rd=set().union(*R[1:])
            elif op.startswith('v_readlane') or op.startswith('v_readfirstlane'):
                self.wr=R[0]; self.rd=set().union(*R[1:])
                if len(R)>2: self.lanesel=R[2]
            elif op.startswith('v_permlane'):
                self.wr=R[0]|R[1]; self.rd=R[0]|R[1]
            elif op in ('v_add_co_u32','v_sub_co_u32','v_addc_co_u32','v_subb_co_u32','v_mad_u64_u32'):
                self.wr=R[0]|R[1]; self.rd=set().union(*R[2:])
            else:
                self.wr=R[0]; self.rd=set().union(*R[1:]) if len(R)>1 else set()
                if op.startswith('v_fmac') or op.startswith('v_dot2c') or self.dpp or 'UNUSED_PRESERVE' in mods or op.startswith('v_writelane'): self.rd|=R[0]
                if op.startswith('v_cndmask') and len(R)==3: self.rd|={'vcc'}
                if op.startswith('v_writelane') and len(R)>2: self.lanesel=R[2]
            return
        if op.startswith('ds_'):
            self.kind='ds'
            if op.startswith('ds_read') or '_rtn' in op or op.startswith('ds_bpermute') or op.startswith('ds_permute') or op.startswith('ds_swizzle'):
                self.wr=R[0]; self.rd=set().union(*R[1:])
            else: self.rd=allr
            return
        if op.startswith('buffer_') or op.startswith('global_') or op.startswith('flat_'):
            self.kind='vmem'
            islds = (' lds' in (' '+mods)) or '_lds_' in op
            if 'load' in op and not islds: self.wr=R[0]; self.rd=set().union(*R[1:]) if len(R)>1 else set()
            elif 'atomic' in op and 'sc0' in mods: self.wr=R[0]; self.rd=set().union(*R[1:])
            else: self.rd=allr
            if 'd16' in op: self.rd|=R[0]
            if islds: self.rd|={'m0'}
            if 'store' in op and ('x3' in op or 'x4' in op):
                self.storedata = R[0] if op.startswith('buffer_') else R[1]
            return
        if op.startswith('s_'):
            self.kind='salu'
            if op.startswith('s_cbranch') or op=='s_branch': self.target=ops[0]; self.kind='branch'; return
            if op in ('s_waitcnt','s_barrier','s_endpgm','s_setprio','s_sleep','s_set_gpr_idx_off'): return
            if op.startswith('s_cmp') or op.startswith('s_bitcmp'): self.rd=allr; return
            if op.startswith('s_load') or op.startswith('s_atomic'): self.kind='smem'
            if op.startswith('s_set_gpr_idx_on'): self.rd=allr; self.wr={'m0'}; return
            self.wr=R[0] if R else set(); self.rd=set().union(*R[1:]) if len(R)>1 else set()
            if 'saveexec' in op: self.wr|={'exec'}; self.rd|={'exec'}
            return
        raise ValueError("unknown instruction: "+text)

def need(p, c):
    n=0
    isv=lambda r: r[0] in 'va' and r not in ('vcc',)
    if p.kind=='valu':
        wv={r for r in p.wr if isv(r)}; wsg={r for r in p.wr if not isv(r)}
        if c.kind=='mfma' and wv & c.rd: n=max(n,2)
        if c.kind=='valu':
            if c.dpp and wv & c.rd: n=max(n,2)
            if c.op.startswith('v_permlane') and wv & c.rd: n=max(n,2)
            if (c.op.startswith('v_readlane') or c.op.startswith('v_readfirstlane')) and wv & c.rd: n=max(n,1)
            if re.sub(r'_e(32|64)$','',p.op) in TRANS and wv & c.rd: n=max(n,1)
            if wsg & c.rd: n=max(n,2)
            if wsg & c.lanesel: n=max(n,4)
            if p.op.startswith('v_dot2') and wv & (c.rd|c.wr):
                same = c.op==p.op
                if same:
                    ops=c.text.split(';')[0].split(',')
                    ab=regs_of(ops[1])|regs_of(ops[2])
                    if wv & ab: n=max(n,3)
                else: n=max(n,3)
            if 'sdwa' in p.op and 'dst_sel:WORD' in p.text and wv & (c.rd|c.wr): n=max(n,1)
        if c.kind in('vmem','ds'):
            if wsg & c.rd: n=max(n,5)
            if re.sub(r'_e(32|64)$','',p.op) in TRANS and wv & c.rd: n=max(n,1)
            if p.op.startswith('v_dot2') and wv & c.rd: n=max(n,3)
        if c.kind in ('salu','smem','branch') and wsg & c.rd: n=max(n,2)
        if c.kind=='mfma' and p.op.startswith('v_dot2') and wv & c.rd: n=max(n,3)
    if p.kind=='mfma':
        big = {2:5,4:8,8:12,16:20}[p.passes]; mid={2:4,4:6,8:10,16:18}[p.passes]
        if c.kind=='mfma':
            if p.wr & c.srcAB: n=max(n,big)
            if p.wr & c.srcC:
                if not (c.srcC==p.wr and c.op==p.op): n=max(n,mid)
            elif p.wr & c.wr: n=max(n,mid)
        elif c.kind in('valu','vmem','ds'):
            if p.wr & (c.rd|c.wr): n=max(n,big)
            if c.kind=='valu' and (p.srcC & c.wr): n=max(n,{2:1,4:3,8:7,16:15}[p.passes])
    if p.kind=='salu' and 'm0' in p.wr and 'm0' in c.rd and c.kind in('vmem','ds','salu','valu'): n=max(n,1)
    if p.kind=='vmem' and p.storedata:
        if p.storedata & c.wr: n=max(n, 2 if c.kind in('valu','mfma') else 1)
    return n

class Asm:
    def __init__(self): self.L=[]
    def __call__(self,s):
        for line in s.split('\n'):
            line=line.strip()
            if line: self.L.append(line)
    def finish(self):
        ins=[Ins(t) for t in self.L]
        labels={i.label:k for k,i in enumerate(ins) if i.kind=='label'}
        out=[]
        WIN=22
        def required(hist, c):
            d=0; r=0
            for p in reversed(hist):
                if p.ws==0: continue
                k=need(p,c)
                if k>d: r=max(r,k-d)
                d+=p.ws
                if d>=WIN: break
            return r
        def nop(n):
            res=[]
            while n>0:
                k=min(n,16); res.append(Ins(f"s_nop {k-1}")); n-=k
            return res
        hist=[]
        nins=0
        for k,c in enumerate(ins):
            if c.kind in('label','dir'):
                out.append(c); continue
            r=required(hist,c)
            if r:
                for x in nop(r): out.append(x); hist.append(x); nins+=1
            if c.kind=='branch':
                tk=labels[c.target]
                extra=0
                while True:
                    h=hist+nop(extra)+[c]
                    bad=0; d=0; j=tk
                    while j<len(ins) and d<WIN:
                        x=ins[j]; j+=1
                        if x.ws==0: continue
                        rr=required(h,x)
                        if rr and d < WIN:
                            pre=required(hist+nop(extra)+[c]+[Ins('s_nop 0')]*0+[y for y in h[len(hist)+len(nop(extra))+1:]], x)
                            own=required([y for y in h[len(hist)+len(nop(extra))+1:]], x)
                            if pre>own: bad=max(bad,pre-own)
                            h=h+nop(rr)
                        h=h+[x]; d+=x.ws
                        if x.kind=='branch' or x.op=='s_endpgm': break
                    if not bad: break
                    extra+=bad
                for x in nop(extra): out.append(x); hist.append(x); nins+=1
            out.append(c); hist.append(c)
            if c.op in('s_branch','s_endpgm'): hist=[]
            hist=hist[-40:]
        self.nops=nins
        return '\n'.join(('' if i.kind in('label','dir') else '    ')+i.text for i in out)+'\n'
```

```python
import sys
sys.path.insert(0,'work')
import __main__ as G0
import importlib
G = sys.modules.get('gen') or G0
from asmlib import Asm
WS_MODF=0x80000

def row_reduce(a, regs):
    for step in ("row_shr:1","row_shr:2","row_shr:4","row_shr:8"):
        for r in regs: a(f"v_add_f32 v{r}, v{r}, v{r} {step} bound_ctrl:0")

K2_H=16640; K2_HCH=4608; K2_Y=K2_H+2*K2_HCH; K2_UV=K2_Y+32768; K2_LDS=K2_UV+4096
def k2(a):
    g=G; f32=g.f32; P_WS=g.P_WS
    a("k2_kernel:")
    g.prologue(a,256,"K2_end")
    g.stamp(a,0)
    a("""
    s_cmp_ge_u32 s3, 4
    s_cbranch_scc1 K2_prep
    s_and_b32 s4, s2, 7
    s_lshl_b32 s4, s4, 5
    s_lshr_b32 s5, s2, 3
    s_add_u32 s4, s4, s5
    s_lshl_b32 s5, s3, 6
    v_add_u32 v1, s5, v0
    v_lshlrev_b32 v2, 13, v1
    s_lshl_b32 s6, s4, 5
    v_add_u32 v2, s6, v2
    v_lshlrev_b32 v3, 5, v1
    v_and_b32 v4, 15, v0
    v_lshrrev_b32 v5, 4, v0         ; j/g
    v_mul_u32_u24 v6, 12288, v4
    v_lshlrev_b32 v7, 11, v5
    v_cmp_eq_u32 vcc, 3, v5
    v_cndmask_b32 v8, 0, v7, vcc
    s_lshl_b32 s7, s4, 3
    v_add3_u32 v6, v6, v7, s7
    v_bfe_u32 v8, v8, 10, 2
    v_lshl_add_u32 v6, v8, 11, v6
    s_waitcnt lgkmcnt(0)
    """)
    g.wsbase(a,8,g.WS_XT); g.wsbase(a,10,g.WS_MODP)
    a(f"""
    s_mul_i32 s12, s4, {2*g.KR_CH}
    s_lshl_b32 s13, s3, 12
    s_add_u32 s12, s12, s13
    """)
    g.wsbase(a,14,g.WS_KR,"s12")
    a(f"""
    s_lshl_b32 s12, s4, 2
    s_add_u32 s50, {g.lo(g.P_DSK)}, s12
    s_addc_u32 s51, {g.hi(g.P_DSK)}, 0
    s_load_dword s52, s[50:51], 0
    global_load_dwordx2 v[10:11], v6, s[10:11]
    global_load_dwordx4 v[16:19], v2, s[8:9]
    global_load_dwordx4 v[20:23], v2, s[8:9] offset:16
    global_load_dwordx4 v[24:27], v3, {P_WS} offset:{g.WS_M}
    global_load_dwordx4 v[28:31], v3, {P_WS} offset:{g.WS_M+16}
    v_add_u32 v3, {g.WS_R}, v3
    global_load_dwordx4 v[32:35], v3, {P_WS}
    global_load_dwordx4 v[36:39], v3, {P_WS} offset:16
    v_lshlrev_b32 v9, 4, v0
    s_mov_b32 m0, s13
    """)
    for i in range(4):
        a(f"global_load_lds_dwordx4 v9, s[14:15] offset:{1024*i}")
    a(f"""
    s_cmp_eq_u32 s3, 3
    s_cbranch_scc0 K2_notail
    s_mov_b32 m0, 16384
    v_add_u32 v9, 4096, v9
    s_mov_b64 exec, 0xffff
    global_load_lds_dwordx4 v9, s[14:15]
    s_mov_b64 exec, -1
    K2_notail:
    """)
    a(f"""
    v_mov_b32 v12, 0
    v_mov_b32 v13, 0
    v_mov_b32 v14, 0
    v_mov_b32 v15, 0
    s_and_b32 s12, s3, 1
    s_mul_i32 s12, s12, {K2_HCH}
    s_add_u32 s12, s12, {K2_H}
    v_lshlrev_b32 v9, 4, v0
    v_add_u32 v9, s12, v9
    s_mov_b64 exec, 0x3fffffff
    ds_write_b128 v9, v[12:15]
    s_mov_b64 exec, -1
    v_lshlrev_b32 v9, 4, v1
    v_add_u32 v9, {K2_H+480}, v9
    """)
    a(f"""
    s_lshr_b32 s12, s3, 1
    s_and_b32 s13, s3, 1
    s_mul_i32 s53, s12, {g.KR_CH}
    s_lshl_b32 s54, s13, 8                  ; 64*c0
    s_sub_u32 s53, s53, s54
    s_add_u32 s53, s53, {2*2031-64*3}
    v_lshlrev_b32 v40, 4, v5
    v_lshlrev_b32 v41, 1, v4
    v_sub_u32 v40, v40, v41
    v_add_u32 v40, s53, v40
    v_and_b32 v41, 1, v4
    v_cmp_eq_u32 vcc, 0, v41
    v_mov_b32 v42, {g.KR_COPY-2}
    v_cndmask_b32 v41, 0, v42, vcc
    v_add_u32 v40, v40, v41
    s_mul_i32 s53, s12, {K2_HCH}
    s_sub_u32 s53, s53, s54
    s_add_u32 s53, s53, {K2_H+448-192}
    v_lshlrev_b32 v48, 5, v4
    v_lshl_add_u32 v48, v5, 4, v48
    v_add_u32 v48, s53, v48                 ; G addr
    s_lshl_b32 s53, s3, 13
    s_add_u32 s53, s53, {K2_Y}
    v_lshlrev_b32 v49, 6, v4
    v_lshl_add_u32 v49, v5, 4, v49
    v_add_u32 v49, s53, v49
    """)
    for i in range(1,8): a(f"v_subrev_u32 v{40+i}, {512*i}, v40")
    a("s_waitcnt vmcnt(10)" )
    row_reduce(a,[10,11])
    a("v_cvt_pk_bf16_f32 v10, v10, v11")
    a("""
    v_readlane_b32 s54, v10, 15
    v_readlane_b32 s55, v10, 31
    v_readlane_b32 s56, v10, 47
    v_readlane_b32 s57, v10, 63
    """)
    a(f"""
    s_lshl_b32 s58, s54, 16
    s_and_b32 s59, s54, 0xffff0000
    s_lshl_b32 s60, s55, 16
    s_and_b32 s61, s55, 0xffff0000
    v_add_f32 v10, 1.0, s60
    v_add_f32 v11, 1.0, s61
    v_cvt_pk_bf16_f32 v10, v10, v11
    v_readfirstlane_b32 s55, v10
    s_lshl_b32 s60, s55, 16
    s_and_b32 s61, s55, 0xffff0000          ; c1a0, c1a1
    s_lshl_b32 s62, s57, 16
    s_and_b32 s63, s57, 0xffff0000
    v_mov_b32 v10, s62
    v_mov_b32 v11, s63
    v_mov_b32 v12, s7
    s_cmp_eq_u32 s3, 0
    s_cbranch_scc0 K2_nogb
    s_mov_b64 exec, 1
    v_add_u32 v12, {WS_MODF}, v12
    global_store_dwordx2 v12, v[10:11], {P_WS}
    s_mov_b64 exec, -1
    K2_nogb:
    s_waitcnt vmcnt(0) lgkmcnt(0)
    """)
    g.stamp(a,1)
    for ch in range(2):
        for j in range(4):
            x=16+4*ch+j; t=60+4*(j%2)
            a(f"""
            v_lshlrev_b32 v{t}, 16, v{x}
            v_and_b32 v{t+1}, 0xffff0000, v{x}
            v_sub_f32 v{t}, v{t}, v{24+2*j}
            v_sub_f32 v{t+1}, v{t+1}, v{25+2*j}
            v_cvt_pk_bf16_f32 v{t+2}, v{t}, v{t+1}
            v_lshlrev_b32 v{t}, 16, v{t+2}
            v_and_b32 v{t+1}, 0xffff0000, v{t+2}
            v_mul_f32 v{t}, v{t}, v{32+2*j}
            v_mul_f32 v{t+1}, v{t+1}, v{33+2*j}
            v_cvt_pk_bf16_f32 v{t+2}, v{t}, v{t+1}
            v_lshlrev_b32 v{t}, 16, v{t+2}
            v_and_b32 v{t+1}, 0xffff0000, v{t+2}
            v_mul_f32 v{t}, s{60+ch}, v{t}
            v_mul_f32 v{t+1}, s{60+ch}, v{t+1}
            v_cvt_pk_bf16_f32 v{t+2}, v{t}, v{t+1}
            v_lshlrev_b32 v{t}, 16, v{t+2}
            v_and_b32 v{t+1}, 0xffff0000, v{t+2}
            v_add_f32 v{t}, s{58+ch}, v{t}
            v_add_f32 v{t+1}, s{58+ch}, v{t+1}
            v_cvt_pk_bf16_f32 v{52+4*ch+j}, v{t}, v{t+1}
            """)
        a(f"ds_write_b128 v9, v[{52+4*ch}:{55+4*ch}] offset:{ch*K2_HCH}")
    a("s_waitcnt lgkmcnt(0)\ns_barrier")
    g.stamp(a,2)
    ACC=64
    def loads(cc,s):
        L=[]
        for i in range(8):
            G_=128+64*s+4*i; F_=96+64*s+4*i
            L.append(f"ds_read_b128 v[{G_}:{G_+3}], v48 offset:{512*i+64*(3-cc)}")
            o=16*(3-cc)
            L.append(f"ds_read2_b32 v[{F_}:{F_+1}], v{40+i} offset0:{o} offset1:{o+1}")
            L.append(f"ds_read2_b32 v[{F_+2}:{F_+3}], v{40+i} offset0:{o+2} offset1:{o+3}")
        return L
    def mf(s,aa,b,first):
        j=aa+b
        c = "0" if first else f"v[{ACC+4*j}:{ACC+4*j+3}]"
        return f"v_mfma_f32_16x16x32_bf16 v[{ACC+4*j}:{ACC+4*j+3}], v[{96+64*s+4*aa}:{99+64*s+4*aa}], v[{128+64*s+4*b}:{131+64*s+4*b}], {c}"
    for l in loads(0,0): a(l)
    touched=set()
    for cc in range(4):
        s=cc&1
        nxt=loads(cc+1,1-s) if cc<3 else []
        order=[]
        for k in range(8):
            grp=[(k,b) for b in range(0,k+1) if k+b<=7]+[(aa,k) for aa in range(0,k) if aa+k<=7]
            order.append(grp)
        issued=0
        for k in range(8):
            if cc==0:
                a(f"s_waitcnt lgkmcnt({min(15,24-3*(k+1)+issued)})") if order[k] else None
            elif k==0: a("s_waitcnt lgkmcnt(0)")
            for (aa,b) in order[k]:
                a(mf(s,aa,b,(aa+b) not in touched)); touched.add(aa+b)
                if cc>0 and issued<len(nxt): a(nxt[issued]); issued+=1
        if cc==0:
            for l in nxt: a(l)
    g.stamp(a,3)
    for j in range(8): a(f"ds_write_b128 v49, v[{ACC+4*j}:{ACC+4*j+3}] offset:{1024*j}")
    a(f"""
    v_lshlrev_b32 v9, 5, v1
    v_add_u32 v9, {K2_Y}, v9
    s_lshl_b32 s12, s4, 13
    v_lshlrev_b32 v2, 4, v1
    v_add_u32 v2, s12, v2
    s_lshl_b32 s54, s52, 16
    s_and_b32 s55, s52, 0xffff0000          ; D0, D1
    s_lshl_b32 s58, s56, 16
    s_and_b32 s59, s56, 0xffff0000
    """)
    g.wsbase(a,8,g.WS_X1T)
    a("s_waitcnt lgkmcnt(0)\ns_barrier")
    for ch in range(2):
        for hf in range(2):
            for k in range(2):
                r=64+16*ch+8*hf+4*k
                a(f"ds_read_b128 v[{r}:{r+3}], v9 offset:{16384*ch+8192*hf+16*k}")
    for ch in range(2):
        a(f"s_waitcnt lgkmcnt({4*(1-ch)})")
        for j in range(4):
            y=64+16*ch+2*j; h=52+4*ch+j; x=16+4*ch+j; t=100+8*(j%2)
            a(f"""
            v_add_f32 v{y}, v{y}, v{y+8}
            v_add_f32 v{y+1}, v{y+1}, v{y+9}
            v_lshlrev_b32 v{t}, 16, v{h}
            v_and_b32 v{t+1}, 0xffff0000, v{h}
            v_cvt_pk_bf16_f32 v{t+2}, v{y}, v{y+1}
            v_mul_f32 v{t}, s{54+ch}, v{t}
            v_mul_f32 v{t+1}, s{54+ch}, v{t+1}
            v_cvt_pk_bf16_f32 v{t+3}, v{t}, v{t+1}
            v_lshlrev_b32 v{t}, 16, v{t+2}
            v_and_b32 v{t+1}, 0xffff0000, v{t+2}
            v_lshlrev_b32 v{t+4}, 16, v{t+3}
            v_and_b32 v{t+5}, 0xffff0000, v{t+3}
            v_add_f32 v{t}, v{t}, v{t+4}
            v_add_f32 v{t+1}, v{t+1}, v{t+5}
            v_cvt_pk_bf16_f32 v{t+2}, v{t}, v{t+1}
            v_lshlrev_b32 v{t}, 16, v{t+2}
            v_and_b32 v{t+1}, 0xffff0000, v{t+2}
            v_mul_f32 v{t}, s{58+ch}, v{t}
            v_mul_f32 v{t+1}, s{58+ch}, v{t+1}
            v_cvt_pk_bf16_f32 v{t+2}, v{t}, v{t+1}
            v_lshlrev_b32 v{t}, 16, v{t+2}
            v_and_b32 v{t+1}, 0xffff0000, v{t+2}
            v_lshlrev_b32 v{t+4}, 16, v{x}
            v_and_b32 v{t+5}, 0xffff0000, v{x}
            v_add_f32 v{t}, v{t}, v{t+4}
            v_add_f32 v{t+1}, v{t+1}, v{t+5}
            v_cvt_pk_bf16_f32 v{120+4*ch+j}, v{t}, v{t+1}
            """)
        a(f"global_store_dwordx4 v2, v[{120+4*ch}:{123+4*ch}], s[8:9]")
        if ch==0: a("v_add_u32 v2, 4096, v2")
    g.stamp(a,4)
    if g.STAMP: a("s_waitcnt vmcnt(0)")
    g.stamp_out(a,1,6)
    a("s_endpgm")
    a(f"""
    K2_prep:
    s_cmp_ge_u32 s2, 224
    s_cbranch_scc1 K2_end
    s_sub_u32 s4, s3, 4                     ; wv
    s_mul_i32 s5, s2, 2341
    s_lshr_b32 s5, s5, 16                   ; kb = b/28
    s_mul_i32 s6, s5, 28
    s_sub_u32 s6, s2, s6                    ; rest
    s_cmp_ge_u32 s6, 14
    s_cselect_b32 s7, 1, 0                  ; mtx
    s_mul_i32 s8, s7, 14
    s_sub_u32 s8, s6, s8                    ; fr
    s_lshl_b32 s9, s5, 2
    s_add_u32 s9, s9, s4                    ; ks
    s_mul_i32 s10, s9, {16*3584}
    s_lshl_b32 s11, s8, 8
    s_add_u32 s10, s10, s11
    v_lshlrev_b32 v1, 2, v0
    v_add_u32 v1, s10, v1
    v_and_b32 v4, 15, v0
    v_lshrrev_b32 v5, 4, v0
    v_mul_u32_u24 v6, 12288, v4
    v_lshlrev_b32 v7, 4, v5
    s_lshl_b32 s10, s9, 6
    s_add_u32 s10, s10, {3*2048}
    v_add3_u32 v6, v6, v7, s10
    s_waitcnt lgkmcnt(0)
    s_cmp_eq_u32 s7, 0
    s_cselect_b32 s12, {g.lo(g.P_WG)}, {g.lo(g.P_WU)}
    s_cselect_b32 s13, {g.hi(g.P_WG)}, {g.hi(g.P_WU)}
    """)
    g.wsbase(a,10,g.WS_MODP)
    a("""
    global_load_dwordx4 v[8:11], v6, s[10:11]
    global_load_dwordx4 v[12:15], v6, s[10:11] offset:2048
    """)
    for r in range(16):
        a(f"global_load_dword v{16+r}, v1, s[12:13]"+(" offset:3584" if r%2 else ""))
        if r%2 and r<15: a("v_add_u32 v1, 7168, v1")
    a("s_barrier")
    a(f"""
    v_lshrrev_b32 v2, 3, v0
    s_lshl_b32 s14, s8, 3
    v_add_u32 v2, s14, v2                   ; mt
    v_and_b32 v3, 7, v0
    v_lshlrev_b32 v3, 1, v3
    s_lshl_b32 s14, s7, 4
    v_add_u32 v3, s14, v3
    v_lshlrev_b32 v6, 15, v2
    v_lshl_add_u32 v6, v3, 4, v6
    s_lshl_b32 s14, s9, 10
    v_add_u32 v6, s14, v6
    v_lshl_add_u32 v7, v2, 5, v3
    s_waitcnt vmcnt(16)
    """)
    row_reduce(a,list(range(8,16)))
    for r in range(8,16): g.rbf(a,r,r)
    for r in range(12,16):
        a(f"v_add_f32 v{r}, 1.0, v{r}"); g.rbf(a,r,r)
    for r in range(16):
        a(f"v_readlane_b32 s{48+r}, v{8+r%4}, {15+16*(r//4)}")
    for r in range(16):
        a(f"v_readlane_b32 s{80+r}, v{12+r%4}, {15+16*(r//4)}")
    g.wsbase(a,10,g.WS_WGU)
    a("""
    s_mov_b32 s15, 0x3f803f80
    v_mov_b32 v60, 0
    v_mov_b32 v61, 0
    v_mov_b32 v62, 0
    v_mov_b32 v63, 0
    """)
    for rp in range(8):
        r0,r1=2*rp,2*rp+1
        a(f"s_waitcnt vmcnt({14-2*rp})")
        a(f"""
        v_lshlrev_b32 v32, 16, v{16+r0}
        v_and_b32 v33, 0xffff0000, v{16+r0}
        v_lshlrev_b32 v34, 16, v{16+r1}
        v_and_b32 v35, 0xffff0000, v{16+r1}
        v_fmac_f32 v62, s{48+r0}, v32
        v_fmac_f32 v63, s{48+r0}, v33
        v_mul_f32 v32, s{80+r0}, v32
        v_mul_f32 v33, s{80+r0}, v33
        v_fmac_f32 v62, s{48+r1}, v34
        v_fmac_f32 v63, s{48+r1}, v35
        v_mul_f32 v34, s{80+r1}, v34
        v_mul_f32 v35, s{80+r1}, v35
        v_cvt_pk_bf16_f32 v{40+rp}, v32, v34
        v_cvt_pk_bf16_f32 v{48+rp}, v33, v35
        v_dot2_f32_bf16 v60, v{40+rp}, s15, v60
        v_dot2_f32_bf16 v61, v{48+rp}, s15, v61
        """)
        if rp%4==3:
            h=rp//4
            a(f"global_store_dwordx4 v6, v[{40+4*h}:{43+4*h}], s[10:11] offset:{512*h}")
            a(f"global_store_dwordx4 v6, v[{48+4*h}:{51+4*h}], s[10:11] offset:{512*h+16}")
    a(f"""
    s_lshl_b32 s14, s4, 10
    s_add_u32 s14, s14, {K2_UV}
    v_lshlrev_b32 v1, 4, v0
    v_add_u32 v2, s14, v1
    ds_write_b128 v2, v[60:63]
    s_waitcnt lgkmcnt(0)
    s_barrier
    s_cmp_eq_u32 s4, 0
    s_cbranch_scc0 K2_pend
    ds_read_b128 v[8:11], v1 offset:{K2_UV}
    ds_read_b128 v[12:15], v1 offset:{K2_UV+1024}
    ds_read_b128 v[16:19], v1 offset:{K2_UV+2048}
    ds_read_b128 v[20:23], v1 offset:{K2_UV+3072}
    s_mul_i32 s14, s5, {2*3584*4}
    v_lshlrev_b32 v7, 2, v7
    v_add_u32 v7, s14, v7
    v_add_u32 v6, {3584*4}, v7
    """)
    g.wsbase(a,10,g.WS_UVP)
    a("s_waitcnt lgkmcnt(0)")
    for k in range(4):
        a(f"v_add_f32 v{8+k}, v{8+k}, v{12+k}\nv_add_f32 v{16+k}, v{16+k}, v{20+k}")
    for k in range(4): a(f"v_add_f32 v{8+k}, v{8+k}, v{16+k}")
    a("""
    global_store_dwordx2 v7, v[8:9], s[10:11]
    global_store_dwordx2 v6, v[10:11], s[10:11]
    K2_pend:
    """)
    g.stamp(a,1); g.stamp(a,2)
    if g.STAMP: a("s_waitcnt vmcnt(0)")
    g.stamp_out(a,1,4)
    a("K2_end:\ns_endpgm")

def register(K):
    K.append(("k2_kernel",k2,256,512,K2_LDS,224))
    try:
        import gen3; gen3.register(K)
    except ImportError: pass
```

```python
import sys
sys.path.insert(0,'work')
import __main__ as G0
G = sys.modules.get('gen') or G0
WS_MODF=0x80000
K3_ST=131072
K3_UV=K3_ST+1024
K3_LDS=K3_UV+8*256
def k3(a):
    g=G; f32=g.f32; P_WS=g.P_WS
    a("k3_kernel:")
    g.prologue(a,224,"K3_end")
    g.stamp(a,0)
    a(f"""
    s_and_b32 s4, s2, 7
    s_lshr_b32 s5, s2, 3
    s_mul_i32 s6, s5, 37
    s_lshr_b32 s6, s6, 8                    ; j/7
    s_mul_i32 s7, s6, 7
    s_sub_u32 s7, s5, s7                    ; j%7
    s_lshr_b32 s8, s4, 1
    s_lshl_b32 s8, s8, 2
    s_add_u32 s8, s8, s6                    ; rb
    s_and_b32 s9, s4, 1
    s_mul_i32 s9, s9, 7
    s_add_u32 s9, s9, s7                    ; fs
    s_lshl_b32 s9, s9, 3
    s_add_u32 s9, s9, s3                    ; mt
    v_lshrrev_b32 v1, 4, v0                 ; gq
    v_and_b32 v2, 15, v0
    v_lshlrev_b32 v3, 2, v1
    v_xor_b32 v3, v3, v2
    v_lshlrev_b32 v3, 4, v3
    v_lshl_add_u32 v3, v1, 12, v3
    s_lshl_b32 s10, s8, 8
    v_add_u32 v3, s10, v3
    v_lshlrev_b32 v4, 4, v0
    s_lshl_b32 s10, s9, 15
    v_add_u32 v4, s10, v4                   ; W' voffset
    s_waitcnt lgkmcnt(0)
    """)
    g.wsbase(a,12,g.WS_X1T)
    a("""
    s_mov_b32 s14, 0x200000
    s_mov_b32 s15, 0x00020000
    """)
    g.wsbase(a,10,g.WS_WGU)
    a("s_lshl_b32 s48, s3, 15")
    a("s_lshl_b32 s49, s3, 11               ; M0 = w*2*1024")
    WR=128
    def issue(qc):
        L=[]
        for i in range(2):
            L.append(f"s_mov_b32 m0, s49\ns_nop 0\nbuffer_load_dwordx4 v3, s[12:15], s48 offen lds\ns_add_u32 s48, s48, {16384 if i==0 else 16384*15}\ns_add_u32 s49, s49, {1024 if i==0 else 1024*15}")
        for k in range(4):
            r=WR+16*(qc%4)+4*k
            L.append(f"global_load_dwordx4 v[{r}:{r+3}], v4, s[10:11] offset:{1024*k}"+("\nv_add_u32 v4, 4096, v4" if k==3 else ""))
        return L
    for qc in range(3):
        for l in issue(qc): a(l)
    a(f"""
    v_lshrrev_b32 v5, 5, v0
    v_mul_u32_u24 v5, {3584*4}, v5
    v_and_b32 v6, 31, v0
    v_lshl_add_u32 v5, v6, 2, v5
    s_lshl_b32 s50, s9, 7
    v_add_u32 v5, s50, v5
    """)
    g.wsbase(a,50,g.WS_UVP)
    for k in range(8):
        a(f"global_load_dword v{16+k}, v5, s[50:51]")
        if k<7: a(f"v_add_u32 v5, {2*3584*4}, v5")
    NEXTRA=8
    a(f"""
    v_lshrrev_b32 v12, 2, v2                ; r
    v_and_b32 v13, 3, v2                    ; c
    v_lshrrev_b32 v14, 1, v1                ; h
    v_lshl_add_u32 v14, v14, 3, v12
    v_lshlrev_b32 v14, 8, v14
    v_and_b32 v15, 1, v1
    v_lshl_add_u32 v14, v15, 5, v14
    v_lshl_add_u32 v14, v13, 3, v14         ; + c*8 (covers (c>>1)*16 + (c&1)*8)
    """)
    for j in range(4):
        a(f"""
        s_add_u32 s52, s3, {j}
        s_and_b32 s52, s52, 3
        v_xor_b32 v15, s52, v12
        v_lshl_add_u32 v{8+j}, v15, 6, v14
        """)
    a("""
    s_mov_b32 s53, 0x3f803f80
    v_mov_b32 v24, 0
    v_mov_b32 v25, 0
    """)
    ACC=64; BR=32
    def breads(ks,s):
        L=[]
        off=4096*(ks%16)
        for j in range(4):
            r=BR+16*s+4*j
            L.append(f"ds_read_b64_tr_b16 v[{r}:{r+1}], v{8+j} offset:{off}")
            L.append(f"ds_read_b64_tr_b16 v[{r+2}:{r+3}], v{8+j} offset:{off+1024}")
        return L
    issued_after={}
    seq=[0]*6+[1]*6+[2]*6+['x']*NEXTRA
    def waitfor(qc):
        last=max(i for i,c in enumerate(seq) if c==qc)
        return len(seq)-1-last
    a(f"s_waitcnt vmcnt({waitfor(0)})\ns_barrier")
    g.stamp(a,1)
    for l in breads(0,0): a(l)
    for ks in range(32):
        qc=ks//4; s=ks&1
        fill=[]
        if ks%4==0 and qc+3<8:
            fill=issue(qc+3)
        if ks==15:
            pass
        if ks%4==2 and qc+1<8:
            a(f"s_waitcnt vmcnt({waitfor(qc+1)})\ns_barrier")
        if ks==15:
            pre=[f"v_add_u32 v{8+j}, 0x10000, v{8+j}" for j in range(4)]
        else: pre=[]
        nxt=breads(ks+1,1-s) if ks<31 else []
        a("s_waitcnt lgkmcnt(0)")
        for p in pre: a(p)
        wr=WR+16*(qc%4)+4*(ks%4)
        b0=BR+16*s
        dots=[]
        for k in range(4):
            dots.append(f"v_dot2_f32_bf16 v24, v{b0+k}, s53, v24")
            dots.append(f"v_dot2_f32_bf16 v25, v{b0+k}, v{b0+k}, v25")
        for j in range(4):
            c="0" if ks==0 else f"v[{ACC+16*j}:{ACC+16*j+15}]"
            a(f"v_mfma_f32_32x32x16_bf16 v[{ACC+16*j}:{ACC+16*j+15}], v[{wr}:{wr+3}], v[{b0+4*j}:{b0+4*j+3}], {c}")
            for l in nxt[2*j:2*j+2]: a(l)
            for l in dots[2*j:2*j+2]: a(l)
            if fill:
                for l in fill[:2]: a(l); seq.append(qc+3)
                fill=fill[2:]
    g.stamp(a,2)
    a(f"""
    v_mov_b32 v26, v24
    v_mov_b32 v27, v25
    s_nop 1
    v_permlane32_swap_b32 v24, v26
    v_permlane32_swap_b32 v25, v27
    v_add_f32 v24, v24, v26
    v_add_f32 v25, v25, v27
    v_mul_f32 v24, {f32(1/512)}, v24
    v_mul_f32 v25, {f32(1/512)}, v25
    v_fma_f32 v25, -v24, v24, v25
    v_max_f32 v25, 0, v25
    """)
    g.rbf(a,24,24); g.rbf(a,25,25)
    a(f"v_add_f32 v25, {f32(1e-5)}, v25"); g.rbf(a,25,25)
    a("v_sqrt_f32 v25, v25"); g.rbf(a,25,25)
    a("v_rcp_f32 v25, v25")
    a("s_waitcnt vmcnt(0)")
    for k in range(1,8): a(f"v_add_f32 v16, v16, v{16+k}")
    a(f"""
    s_and_b32 s52, s3, 3
    s_lshl_b32 s52, s52, 8
    s_add_u32 s52, s52, {K3_ST}
    v_lshlrev_b32 v26, 3, v6
    v_add_u32 v27, s52, v26
    ds_write_b64 v27, v[24:25]
    s_lshl_b32 s52, s3, 8
    s_add_u32 s52, s52, {K3_UV}
    v_lshlrev_b32 v27, 2, v0
    v_add_u32 v27, s52, v27
    ds_write_b32 v27, v16
    v_lshrrev_b32 v28, 5, v0
    v_lshlrev_b32 v28, 4, v28
    v_add_u32 v28, s52, v28
    s_waitcnt lgkmcnt(0)
    s_barrier
    """)
    for q in range(4):
        a(f"ds_read_b128 v[{32+4*q}:{35+4*q}], v28 offset:{32*q}")
        a(f"ds_read_b128 v[{48+4*q}:{51+4*q}], v28 offset:{128+32*q}")
    for j in range(4):
        a(f"""
        s_add_u32 s52, s3, {j}
        s_and_b32 s52, s52, 3
        s_lshl_b32 s54, s52, 8
        s_add_u32 s54, s54, {K3_ST}
        v_add_u32 v27, s54, v26
        ds_read_b64 v[{16+2*j}:{17+2*j}], v27
        s_lshl_b32 s54, s8, 2
        s_add_u32 s54, s54, s52
        s_mul_i32 s54, s54, 112
        s_add_u32 s54, s54, s9
        s_lshl_b32 s{56+j}, s54, 10
        """)
    g.wsbase(a,10,g.WS_HH)
    K0=-2*0.7978845608028654*1.4426950408889634; K1=K0*0.044715
    a(f"""
    s_mov_b32 s60, {f32(K0)}
    s_mov_b32 s61, {f32(K1)}
    v_lshlrev_b32 v4, 4, v0
    s_waitcnt lgkmcnt(0)
    """)
    for j in range(4):
        m=16+2*j; r=17+2*j; A=ACC+16*j
        for e in range(0,8,2):
            t=128+8*((e//2)%2)
            for d in range(2):
                ga=A+e+d; ua=A+8+e+d
                a(f"""
                v_fma_f32 v{ga}, -v{m}, v{32+e+d}, v{ga}
                v_fma_f32 v{ua}, -v{m}, v{40+e+d}, v{ua}
                v_fma_f32 v{ga}, v{ga}, v{r}, v{48+e+d}
                v_fma_f32 v{ua}, v{ua}, v{r}, v{56+e+d}
                v_mul_f32 v{t+d}, v{ga}, v{ga}
                v_mov_b32 v{t+2+d}, s60
                v_fma_f32 v{t+d}, v{t+d}, s61, v{t+2+d}
                v_mul_f32 v{t+d}, v{t+d}, v{ga}
                v_exp_f32 v{t+d}, v{t+d}
                v_mul_f32 v{ga}, v{ga}, v{ua}
                v_add_f32 v{t+d}, 1.0, v{t+d}
                v_rcp_f32 v{t+d}, v{t+d}
                """)
            a(f"""
            v_mul_f32 v{t}, v{t}, v{A+e}
            v_mul_f32 v{t+1}, v{t+1}, v{A+e+1}
            v_cvt_pk_bf16_f32 v{144+4*j+e//2}, v{t}, v{t+1}
            """)
        a(f"v_add_u32 v5, s{56+j}, v4")
        a(f"global_store_dwordx4 v5, v[{144+4*j}:{147+4*j}], s[10:11]")
    g.stamp(a,3)
    if g.STAMP: a("s_waitcnt vmcnt(0)")
    g.stamp_out(a,2,5)
    a("K3_end:\ns_endpgm")

K4_LDS=4*3*4096
def k4(a):
    g=G; f32=g.f32; P_WS=g.P_WS
    a("k4_kernel:")
    g.prologue(a,256,"K4_end")
    g.stamp(a,0)
    a(f"""
    s_and_b32 s4, s2, 7
    s_lshr_b32 s5, s2, 3
    s_lshr_b32 s6, s5, 3
    s_lshl_b32 s4, s4, 2
    s_add_u32 s6, s6, s4                    ; tb64
    s_and_b32 s7, s5, 7                     ; db64
    s_mul_i32 s8, s3, {28*1024}
    s_mul_i32 s9, s7, {2*112*1024}
    s_add_u32 s9, s9, s8
    s_mul_i32 s10, s6, {2*112*1024}
    s_add_u32 s10, s10, s8
    v_lshlrev_b32 v1, 4, v0
    v_add_u32 v2, s9, v1
    v_add_u32 v3, {112*1024}, v2
    v_add_u32 v4, s10, v1
    v_add_u32 v5, {112*1024}, v4
    s_waitcnt lgkmcnt(0)
    """)
    g.wsbase(a,8,g.WS_WD); g.wsbase(a,10,g.WS_HH)
    D=11; RB=80
    ACC=16
    def issue(k):
        r=RB+16*(k%D); o=1024*(k%4)
        L=[f"global_load_dwordx4 v[{r}:{r+3}], v2, s[8:9] offset:{o}",
           f"global_load_dwordx4 v[{r+8}:{r+11}], v4, s[10:11] offset:{o}",
           f"global_load_dwordx4 v[{r+4}:{r+7}], v3, s[8:9] offset:{o}",
           f"global_load_dwordx4 v[{r+12}:{r+15}], v5, s[10:11] offset:{o}"]
        if k%4==3: L[-1]+="".join(f"\nv_add_u32 v{x}, 4096, v{x}" for x in (2,3,4,5))
        return L
    for k in range(D):
        for l in issue(k): a(l)
    for k in range(28):
        r=RB+16*(k%D)
        rem=min(27,k+D-1)-k
        a(f"s_waitcnt vmcnt({4*rem})")
        nx=issue(k+D) if k+D<28 else []
        if k==0: g.stamp(a,1)
        for i in range(2):
            for j in range(2):
                t=ACC+16*(2*i+j)
                c="0" if k==0 else f"v[{t}:{t+15}]"
                a(f"v_mfma_f32_32x32x16_bf16 v[{t}:{t+15}], v[{r+4*i}:{r+4*i+3}], v[{r+8+4*j}:{r+8+4*j+3}], {c}")
        for l in nx: a(l)
    g.stamp(a,2)
    a(f"""
    s_lshr_b32 s12, s3, 1
    s_and_b32 s13, s3, 1
    s_lshl_b32 s14, s7, 1
    s_add_u32 s14, s14, s12                 ; d32 block
    s_lshl_b32 s15, s6, 1
    s_add_u32 s15, s15, s13                 ; t32 block
    v_and_b32 v6, 31, v0
    v_lshrrev_b32 v7, 5, v0
    s_lshl_b32 s48, s14, 17                 ; d32*32*4096
    s_lshl_b32 s49, s15, 6
    s_add_u32 s48, s48, s49
    v_lshlrev_b32 v8, 14, v7                ; 4h*4096
    v_lshl_add_u32 v8, v6, 1, v8
    v_add_u32 v8, s48, v8                   ; X1T offset
    s_lshl_b32 s48, s14, 7
    s_add_u32 s48, s48, {WS_MODF}
    v_lshlrev_b32 v9, 4, v7
    v_add_u32 v9, s48, v9
    s_lshl_b32 s48, s15, 15
    s_lshl_b32 s49, s14, 6
    s_add_u32 s48, s48, s49
    v_lshlrev_b32 v10, 10, v6
    v_lshl_add_u32 v10, v7, 3, v10
    v_add_u32 v10, s48, v10
    """)
    g.wsbase(a,50,g.WS_X1T)
    for q in range(4):
        a(f"global_load_dwordx4 v[{96+4*q}:{99+4*q}], v9, {P_WS} offset:{32*q}")
    for r in range(16):
        a(f"global_load_ushort v{80+r}, v8, s[50:51]")
        if r<15: a(f"v_add_u32 v8, {4096 if r%4<3 else 4096*5}, v8")
    for o in range(1,4):
        pass
    a("s_cmp_eq_u32 s3, 0\ns_cbranch_scc1 K4_w0\ns_cmp_eq_u32 s3, 1\ns_cbranch_scc1 K4_w1\ns_cmp_eq_u32 s3, 2\ns_cbranch_scc1 K4_w2")
    for w in (3,2,1,0):
        if w!=3: a(f"K4_w{w}:")
        for own in range(4):
            if own==w: continue
            k=(w-own-1)&3
            for q in range(4):
                t=ACC+16*own+4*q
                a(f"ds_write_b128 v1, v[{t}:{t+3}] offset:{(own*3+k)*4096+q*1024}")
        if w!=0:
            for r in range(16): a(f"v_mov_b32 v{ACC+r}, v{ACC+16*w+r}")
            a("s_branch K4_join")
    a(f"""
    K4_join:
    s_mul_i32 s48, s3, {3*4096}
    v_add_u32 v1, s48, v1
    s_waitcnt lgkmcnt(0)
    s_barrier
    """)
    for k in range(3):
        for q in range(4):
            t=32+16*k+4*q
            a(f"ds_read_b128 v[{t}:{t+3}], v1 offset:{k*4096+q*1024}")
    for k in range(3):
        a(f"s_waitcnt lgkmcnt({8-4*k})")
        for r in range(16): a(f"v_add_f32 v{ACC+r}, v{ACC+r}, v{32+16*k+r}")
    a("s_waitcnt vmcnt(0)")
    for q in range(4):
        for p in range(2):
            r=4*q+2*p; t=112+4*p
            a(f"""
            v_cvt_pk_bf16_f32 v{t+2}, v{ACC+r}, v{ACC+r+1}
            v_lshlrev_b32 v{t}, 16, v{t+2}
            v_and_b32 v{t+1}, 0xffff0000, v{t+2}
            v_mul_f32 v{t}, v{t}, v{96+r}
            v_mul_f32 v{t+1}, v{t+1}, v{97+r}
            v_cvt_pk_bf16_f32 v{t+2}, v{t}, v{t+1}
            v_lshlrev_b32 v{t}, 16, v{t+2}
            v_and_b32 v{t+1}, 0xffff0000, v{t+2}
            v_lshlrev_b32 v{80+r}, 16, v{80+r}
            v_lshlrev_b32 v{81+r}, 16, v{81+r}
            v_add_f32 v{t}, v{t}, v{80+r}
            v_add_f32 v{t+1}, v{t+1}, v{81+r}
            v_cvt_pk_bf16_f32 v{120+2*q+p}, v{t}, v{t+1}
            """)
        a(f"global_store_dwordx2 v10, v[{120+2*q}:{121+2*q}], {g.P_OUT} offset:{16*q}")
    g.stamp(a,3)
    if g.STAMP: a("s_waitcnt vmcnt(0)")
    g.stamp_out(a,3,5)
    a("K4_end:\ns_endpgm")

def register(K):
    K.append(("k3_kernel",k3,224,512,K3_LDS,192))
    K.append(("k4_kernel",k4,256,256,K4_LDS,256))
```

```python
import sys, struct
sys.path.insert(0,'work')
from asmlib import Asm
NAME="adaLN_cond__ssm_conv_s4d__glu_gated_geglu__prompt"
def f32(x): return "0x%08x"%struct.unpack('<I',struct.pack('<f',x))[0]
LOG2E=f32(1.4426950408889634)

WS_M=0x0; WS_R=0x2000; WS_MODP=0x4000
WS_UVP=0x40000
WS_XT=0x100000; WS_KR=0x300000; KR_CH=8320; KR_COPY=4160
WS_WD=0x800000; WS_WGU=0xA00000; WS_X1T=0xE00000; WS_HH=0x1000000

P_X,P_LOGA,P_AIM,P_CR,P_CI,P_LOGDT,P_DSK,P_BX,P_WG,P_WU,P_WD,P_C,P_WMOD,P_OUT,P_DBG,P_WS=[f"s[{16+2*i}:{17+2*i}]" for i in range(16)]
def lo(p): return "s"+p[2:].split(':')[0]
def hi(p): return "s"+p.split(':')[1][:-1]

def prologue(a, nwg, end):
    a(f"""
    s_load_dwordx16 s[16:31], s[0:1], 0
    s_load_dwordx16 s[32:47], s[0:1], 64
    s_cmp_ge_u32 s2, {nwg}
    s_cbranch_scc1 {end}
    v_lshrrev_b32 v1, 6, v0
    v_readfirstlane_b32 s3, v1
    v_and_b32 v0, 63, v0
    """)
import os
STAMP=int(os.environ.get("STAMP","0"))
WS_STAMP=0x2000000
def stamp(a,k):
    if STAMP: a(f"s_memrealtime s[{64+2*k}:{65+2*k}]")
def stamp_out(a,kid,n):
    if not STAMP: return
    stamp(a,n-1)
    a(f"""
    s_mov_b64 exec, 1
    s_waitcnt vmcnt(0) lgkmcnt(0)
    s_lshl_b32 s80, s2, 4
    s_add_u32 s80, s80, s3
    s_lshl_b32 s80, s80, 6
    s_add_u32 s80, s80, {WS_STAMP+kid*0x100000:#x}
    v_mov_b32 v1, s80
    """)
    for k in range(n):
        a(f"v_mov_b32 v2, s{64+2*k}\nv_mov_b32 v3, s{65+2*k}\nglobal_store_dwordx2 v1, v[2:3], {P_WS} offset:{8*k}")
def wsbase(a, dst, off, extra=None):
    a(f"s_add_u32 s{dst}, {lo(P_WS)}, {off:#x}")
    a(f"s_addc_u32 s{dst+1}, {hi(P_WS)}, 0")
    if extra:
        a(f"s_add_u32 s{dst}, s{dst}, {extra}")
        a(f"s_addc_u32 s{dst+1}, s{dst+1}, 0")
def rbf(a, d, s):
    a(f"v_cvt_pk_bf16_f32 v{d}, v{s}, v{s}")
    a(f"v_lshlrev_b32 v{d}, 16, v{d}")
def cmul(a, r, x, y, t):
    a(f"v_pk_mul_f32 v[{t}:{t+1}], v[{x}:{x+1}], v[{y}:{y+1}] op_sel:[1,1] op_sel_hi:[1,0]")
    a(f"v_pk_fma_f32 v[{r}:{r+1}], v[{x}:{x+1}], v[{y}:{y+1}], v[{t}:{t+1}] op_sel:[0,0,0] op_sel_hi:[0,1,1] neg_lo:[0,0,1]")
def wave_reduce(a, op, regs):
    for step in ("row_shr:1","row_shr:2","row_shr:4","row_shr:8"):
        for r in regs: a(f"{op} v{r}, v{r}, v{r} {step} bound_ctrl:0")
    for r in regs: a(f"{op} v{r}, v{r}, v{r} row_bcast:15 row_mask:0xa")
    for r in regs: a(f"{op} v{r}, v{r}, v{r} row_bcast:31 row_mask:0xc")

K1_TAB=0x4280*4
K1_LDS=K1_TAB+4*3072
XYW=53*272
def k1(a):
    a("k1_kernel:")
    prologue(a,256,"K1_end")
    stamp(a,0)
    a("""
    s_cmp_lt_u32 s3, 4
    s_cbranch_scc1 K1_kgen
    s_cmp_lt_u32 s3, 8
    s_cbranch_scc1 K1_ln
    s_cmp_lt_u32 s3, 10
    s_cbranch_scc1 K1_mod
    """)
    a(f"""
    s_cmp_ge_u32 s2, 224
    s_cbranch_scc1 K1_end
    s_lshl_b32 s4, s2, 1
    s_add_u32 s4, s4, s3
    s_sub_u32 s4, s4, 10            ; unit u
    s_lshr_b32 s5, s4, 2            ; fg
    s_and_b32 s6, s4, 3             ; dq
    s_lshl_b32 s7, s5, 14
    s_lshl_b32 s8, s6, 8
    s_add_u32 s7, s7, s8
    v_lshlrev_b32 v1, 2, v0
    v_add_u32 v1, s7, v1
    v_add_u32 v2, 0x1000, v1
    v_add_u32 v3, 0x2000, v1
    v_add_u32 v4, 0x3000, v1
    s_waitcnt lgkmcnt(0)
    """)
    for r in range(16):
        a(f"global_load_dword v{8+r}, v{1+r//4}, {P_WD} offset:{(r%4)*1024}")
    a(f"""
    v_lshrrev_b32 v5, 4, v0
    s_lshl_b32 s8, s6, 2
    v_add_u32 v5, s8, v5
    s_movk_i32 s9, 112
    v_mul_lo_u32 v5, v5, s9
    v_add_u32 v5, s5, v5
    v_lshlrev_b32 v5, 10, v5
    v_and_b32 v6, 15, v0
    v_lshlrev_b32 v6, 5, v6
    v_add_u32 v5, v5, v6
    s_mov_b32 s10, 0x05040100
    s_mov_b32 s11, 0x07060302
    """)
    wsbase(a,12,WS_WD)
    a("s_waitcnt vmcnt(0)")
    stamp(a,1)
    for dd in range(2):
        for h in range(2):
            o=24+ (dd*2+h)*4
            rows=[4*h,4*h+2,8+4*h,8+4*h+2]
            for j,r in enumerate(rows):
                a(f"v_perm_b32 v{o+j}, v{8+r+1}, v{8+r}, s{10+dd}")
            a(f"global_store_dwordx4 v5, v[{o}:{o+3}], s[12:13] offset:{h*512+dd*16}")
    stamp(a,2); a("s_waitcnt vmcnt(0)") if STAMP else None
    stamp_out(a,0,4)
    a("s_endpgm")
    a(f"""
    K1_mod:
    s_cmp_ge_u32 s2, 192
    s_cbranch_scc1 K1_end
    s_lshl_b32 s4, s2, 1
    s_add_u32 s4, s4, s3
    s_sub_u32 s4, s4, 8             ; unit u 0..383
    s_mul_i32 s5, s4, 2731
    s_lshr_b32 s5, s5, 16           ; ks = u/24
    s_mul_i32 s6, s5, 24
    s_sub_u32 s6, s4, s6            ; cg
    s_mul_i32 s7, s5, {32*6144}
    s_lshl_b32 s8, s6, 8
    s_add_u32 s7, s7, s8
    v_lshlrev_b32 v1, 2, v0
    v_add_u32 v1, s7, v1
    v_and_b32 v2, 31, v0
    v_lshlrev_b32 v2, 1, v2
    s_lshl_b32 s9, s5, 6
    v_add_u32 v2, s9, v2
    s_waitcnt lgkmcnt(0)
    global_load_ushort v3, v2, {P_C}
    """)
    for r in range(32):
        a(f"global_load_dword v{8+r}, v1, {P_WMOD}")
        if r<31: a("v_add_u32 v1, 0x1800, v1")
    a(f"""
    s_mul_i32 s7, s5, 12288
    s_lshl_b32 s8, s6, 9
    s_add_u32 s7, s7, s8
    v_lshlrev_b32 v2, 3, v0
    v_add_u32 v2, s7, v2
    """)
    wsbase(a,12,WS_MODP)
    a(f"""
    s_waitcnt vmcnt(32)
    v_lshlrev_b32 v3, 16, v3
    v_mul_f32 v4, {f32(-1.4426950408889634)}, v3
    v_exp_f32 v4, v4
    v_add_f32 v4, 1.0, v4
    v_rcp_f32 v4, v4
    v_mul_f32 v4, v3, v4
    """)
    rbf(a,4,4)
    a("v_mov_b32 v6, 0\nv_mov_b32 v7, 0")
    for r in range(32):
        if r%4==0: a(f"s_waitcnt vmcnt({28-r})")
        a(f"v_readlane_b32 s{48+r%4}, v4, {r}")
        a(f"v_lshlrev_b32 v{44+(r%2)*2}, 16, v{8+r}")
        a(f"v_and_b32 v{45+(r%2)*2}, 0xffff0000, v{8+r}")
        a(f"v_fmac_f32 v6, s{48+r%4}, v{44+(r%2)*2}")
        a(f"v_fmac_f32 v7, s{48+r%4}, v{45+(r%2)*2}")
    stamp(a,1)
    a("global_store_dwordx2 v2, v[6:7], s[12:13]")
    stamp(a,2); a("s_waitcnt vmcnt(0)") if STAMP else None
    stamp_out(a,0,4)
    a("s_endpgm")
    a(f"""
    K1_ln:
    s_sub_u32 s4, s3, 4
    s_lshl_b32 s5, s2, 13
    s_lshl_b32 s6, s4, 8
    s_add_u32 s6, s6, s5
    v_lshlrev_b32 v1, 2, v0
    v_add_u32 v1, s6, v1
    v_add_u32 v2, 0x1000, v1
    s_lshl_b32 s7, s4, 11
    s_add_u32 s7, s7, s5
    v_lshlrev_b32 v3, 4, v0
    v_add_u32 v3, s7, v3
    s_waitcnt lgkmcnt(0)
    global_load_dwordx4 v[16:19], v3, {P_X}
    global_load_dwordx4 v[20:23], v3, {P_X} offset:1024
    """)
    for r in range(8):
        a(f"global_load_dword v{8+r}, v{1+r//4}, {P_X} offset:{(r%4)*1024}")
    a(f"""
    s_lshl_b32 s6, s4, 11
    s_add_u32 s6, s6, s5
    v_lshlrev_b32 v4, 5, v0
    v_add_u32 v4, s6, v4
    s_mov_b32 s10, 0x05040100
    s_mov_b32 s11, 0x07060302
    s_mov_b32 s9, 0x3f803f80
    """)
    wsbase(a,12,WS_XT)
    a("""
    v_mov_b32 v40, 0
    v_mov_b32 v41, 0
    v_mov_b32 v42, 0
    v_mov_b32 v43, 0
    s_waitcnt vmcnt(8)
    """)
    for j in range(4):
        a(f"v_dot2_f32_bf16 v40, v{16+j}, s9, v40")
        a(f"v_dot2_f32_bf16 v41, v{16+j}, v{16+j}, v41")
        a(f"v_dot2_f32_bf16 v42, v{20+j}, s9, v42")
        a(f"v_dot2_f32_bf16 v43, v{20+j}, v{20+j}, v43")
    a("s_waitcnt vmcnt(0)")
    stamp(a,1)
    for dd in range(2):
        for j in range(4):
            a(f"v_perm_b32 v{24+dd*4+j}, v{8+2*j+1}, v{8+2*j}, s{10+dd}")
        a(f"global_store_dwordx4 v4, v[{24+dd*4}:{27+dd*4}], s[12:13] offset:{dd*16}")
    wave_reduce(a,"v_add_f32",[40,41,42,43])
    for s,q in ((40,41),(42,43)):
        a(f"""
        v_mul_f32 v{s}, {f32(1/512)}, v{s}
        v_mul_f32 v{q}, {f32(1/512)}, v{q}
        v_fma_f32 v{q}, -v{s}, v{s}, v{q}
        v_max_f32 v{q}, 0, v{q}
        """)
        rbf(a,s,s); rbf(a,q,q)
        a(f"v_add_f32 v{q}, {f32(1e-5)}, v{q}")
        rbf(a,q,q)
        a(f"v_sqrt_f32 v{q}, v{q}")
        rbf(a,q,q)
        a(f"v_rcp_f32 v{q}, v{q}")
    a(f"""
    v_mov_b32 v44, v40
    v_mov_b32 v45, v42
    v_mov_b32 v46, v41
    v_mov_b32 v47, v43
    s_lshl_b32 s6, s2, 5
    s_lshl_b32 s7, s4, 3
    s_add_u32 s6, s6, s7
    v_mov_b32 v5, s6
    s_mov_b64 exec, 0
    s_bitset1_b64 exec, 63
    global_store_dwordx2 v5, v[44:45], {P_WS} offset:{WS_M}
    v_add_u32 v5, {WS_R}, v5
    global_store_dwordx2 v5, v[46:47], {P_WS}
    """)
    stamp(a,2); a("s_waitcnt vmcnt(0)") if STAMP else None
    stamp_out(a,0,4)
    a("s_endpgm")
    a(f"""
    K1_kgen:
    s_lshr_b32 s5, s3, 1
    s_lshl_b32 s6, s2, 1
    s_add_u32 s6, s6, s5            ; channel
    s_and_b32 s7, s3, 1
    s_lshl_b32 s8, s6, 8
    s_lshl_b32 s9, s7, 7
    s_add_u32 s8, s8, s9
    v_lshlrev_b32 v1, 1, v0
    v_add_u32 v1, s8, v1
    s_lshl_b32 s9, s6, 1
    v_mov_b32 v2, s9
    s_waitcnt lgkmcnt(0)
    global_load_ushort v7, v2, {P_LOGDT}
    global_load_ushort v3, v1, {P_LOGA}
    global_load_ushort v4, v1, {P_AIM}
    global_load_ushort v5, v1, {P_CR}
    global_load_ushort v6, v1, {P_CI}
    s_mul_i32 s10, s3, {XYW}
    v_lshlrev_b32 v8, 2, v0
    v_add_u32 v8, s10, v8
    v_and_b32 v9, 31, v0
    v_mul_u32_u24 v9, 272, v9
    v_lshrrev_b32 v10, 5, v0
    v_lshlrev_b32 v11, 4, v10
    v_add3_u32 v9, v9, v11, s10
    s_waitcnt vmcnt(3)
    v_lshlrev_b32 v7, 16, v7
    v_lshlrev_b32 v3, 16, v3
    v_mul_f32 v7, {LOG2E}, v7
    v_mul_f32 v3, {LOG2E}, v3
    v_exp_f32 v7, v7
    v_exp_f32 v3, v3
    """)
    rbf(a,7,7); rbf(a,3,3)
    a(f"""
    v_mul_f32 v3, v3, v7
    v_mul_f32 v3, {f32(-1.4426950408889634)}, v3
    s_waitcnt vmcnt(0)
    v_lshlrev_b32 v4, 16, v4
    v_lshlrev_b32 v5, 16, v5
    v_lshlrev_b32 v6, 16, v6
    v_mul_f32 v4, v4, v7
    v_mul_f32 v4, 0.15915494, v4
    v_mul_f32 v12, v5, v7
    v_mul_f32 v13, v6, v7                        ; C = v[12:13]
    v_max_f32 v14, abs(v12), abs(v13)
    """)
    stamp(a,1)
    for (r,p) in ((16,1),(18,8),(20,64),(22,256)):
        a(f"""
        v_mul_f32 v24, {f32(p)}, v3
        v_mul_f32 v25, {f32(p)}, v4
        v_exp_f32 v24, v24
        v_fract_f32 v25, v25
        v_cos_f32 v{r}, v25
        v_sin_f32 v{r+1}, v25
        v_mul_f32 v{r}, v{r}, v24
        v_mul_f32 v{r+1}, v{r+1}, v24
        """)
    wave_reduce(a,"v_max_f32",[14])
    a(f"""
    v_readlane_b32 s11, v14, 63
    s_lshr_b32 s11, s11, 23
    s_max_u32 s11, s11, 32
    s_min_u32 s11, s11, 250
    s_sub_u32 s12, 268, s11
    s_lshl_b32 s12, s12, 23         ; scale
    s_sub_u32 s13, s11, 28
    s_lshl_b32 s13, s13, 23
    v_mul_f32 v12, s12, v12
    v_mul_f32 v13, s12, v13
    """)
    W1,W8,W64,W256=16,18,20,22
    W2,W4,W128,W192=26,28,30,32
    cmul(a,W2,W1,W1,24); cmul(a,W128,W64,W64,34); cmul(a,W4,W2,W2,24); cmul(a,W192,W128,W64,34)
    YB=40
    cv=[100]
    def outX(row,r):
        d=cv[0]; cv[0]=100+(cv[0]-100+1)%8
        a(f"v_cvt_pk_f16_f32 v{d}, v{r}, v{r+1}")
        a(f"ds_write_b32 v8, v{d} offset:{row*272}")
    def outY(col,r):
        d=cv[0]; cv[0]=100+(cv[0]-100+1)%8
        a(f"v_cvt_pk_f16_f32 v{d}, v{r}, -v{r+1}")
        a(f"ds_write_b32 v8, v{d} offset:{(21+col)*272}")
    a(f"v_mov_b32 v{YB}, {f32(32768.0)}\nv_mov_b32 v{YB+1}, 0")
    outY(0,YB); outX(0,12)
    XA,XB2=56,58
    Z=[None]+[60+2*i for i in range(8)]
    prevx=12; prevz=12
    for b in range(1,9):
        if b<8: cmul(a,YB+2*b,YB+2*(b-1),W8,24)
        if b<8:
            nx=XA if b%2 else XB2
            cmul(a,nx,prevx,W1,34)
        cmul(a,Z[b],prevz,W256,36)
        if b<8: outY(b,YB+2*b); outX(b,nx); prevx=nx
        prevz=Z[b]
    outX(8,Z[1]); outX(12,Z[2]); outX(14,Z[3])
    for i in range(4,9): outX(12+i,Z[i])
    cmul(a,76,Z[1],W2,24); cmul(a,78,Z[2],W4,34); cmul(a,80,Z[3],W4,36)
    outX(9,76); outX(13,78); outX(15,80)
    cmul(a,82,76,W2,24); outX(10,82); cmul(a,84,82,W2,24); outX(11,84)
    tp=[24,34,36,38]
    n=0
    for g,W in ((1,W64),(2,W128),(3,W192)):
        for j in range(8):
            r=86+2*(n%4); cmul(a,r,YB+2*j,W,tp[n%4]); outY(8*g+j,r); n+=1
    a("s_waitcnt lgkmcnt(0)")
    for s in range(8):
        a(f"ds_read_b128 v[{40+8*s}:{43+8*s}], v9 offset:{32*s}")
        a(f"ds_read_b128 v[{44+8*s}:{47+8*s}], v9 offset:{21*272+32*s}")
    a(f"""
    s_mul_i32 s10, s3, 3072
    s_add_u32 s10, s10, {K1_TAB}
    v_and_b32 v1, 31, v0                    ; j
    v_lshlrev_b32 v2, 5, v1
    v_lshl_add_u32 v2, v10, 4, v2
    v_add_u32 v2, s10, v2                   ; regs0-3: (8j+4h)*4
    v_lshlrev_b32 v3, 4, v1
    v_add_u32 v3, {256*4}, v3               ; h=0: (256+4j)*4
    v_lshlrev_b32 v4, 3, v1
    v_add_u32 v4, {384*4}, v4               ; h=1: (384+2j)*4
    v_add_u32 v5, 8, v3
    v_add_u32 v6, 256, v4
    v_cmp_eq_u32 vcc, 0, v10
    v_cndmask_b32 v3, v4, v3, vcc
    v_cndmask_b32 v5, v6, v5, vcc
    v_add_u32 v3, s10, v3
    v_add_u32 v5, s10, v5
    v_lshlrev_b32 v6, 2, v1
    v_lshl_add_u32 v6, v10, 9, v6
    v_add_u32 v6, s10, v6                   ; (512+128h+j)*4 - 2048
    """)
    for s in range(8):
        a(f"s_waitcnt lgkmcnt({14-2*s})")
        c = "0" if s==0 else "v[16:31]"
        a(f"v_mfma_f32_32x32x16_f16 v[16:31], v[{40+8*s}:{43+8*s}], v[{44+8*s}:{47+8*s}], {c}")
    for r in range(12): a(f"v_mul_f32 v{16+r}, s13, v{16+r}")
    a("ds_write_b128 v2, v[16:19]")
    a("ds_write_b64 v3, v[20:21]")
    a("ds_write_b64 v5, v[22:23]")
    for r in range(4): a(f"ds_write_b32 v6, v{24+r} offset:{2048+128*r}")
    a(f"""
    s_lshl_b32 s8, s7, 6
    v_add_u32 v1, s8, v0                    ; tid2
    v_lshlrev_b32 v2, 3, v1
    v_sub_u32 v3, 2047, v2                  ; L_A
    v_sub_u32 v4, 1023, v2                  ; L_B
    v_cvt_f32_u32 v5, v3
    v_cvt_f32_u32 v6, v4
    v_lshlrev_b32 v7, 2, v4
    v_add_u32 v7, {K1_TAB}, v7
    v_cmp_gt_u32 vcc, 256, v4
    """)
    for u,(fL,ab) in enumerate(((5,40),(6,50))):
        for k in range(0,9,2):
            a(f"v_add_f32 v32, {f32(-k)}, v{fL}" if k else f"v_mov_b32 v32, v{fL}")
            a(f"v_add_f32 v33, {f32(-k-1)}, v{fL}")
            a(f"v_cvt_pk_bf16_f32 v34, v32, v33")
            a(f"v_lshlrev_b32_sdwa v{ab+k}, 2, v34 dst_sel:DWORD dst_unused:UNUSED_PAD src0_sel:DWORD src1_sel:WORD_0")
            if k<8: a(f"v_lshlrev_b32_sdwa v{ab+k+1}, 2, v34 dst_sel:DWORD dst_unused:UNUSED_PAD src0_sel:DWORD src1_sel:WORD_1")
        if u==1:
            for k in range(9):
                a(f"v_subrev_u32 v35, {4*k}, v7")
                a(f"v_cndmask_b32 v{ab+k}, v{ab+k}, v35, vcc")
    a(f"""
    v_cmp_eq_u32 vcc, 127, v1
    s_mul_i32 s8, s6, {KR_CH}
    v_lshlrev_b32 v2, 4, v1
    v_add_u32 v2, s8, v2
    """)
    wsbase(a,14,WS_KR)
    stamp(a,2)
    a("s_waitcnt lgkmcnt(0)\ns_barrier")
    stamp(a,3)
    a("s_cmp_eq_u32 s5, 0\ns_cbranch_scc0 K1_exp1")
    def expand(off0):
        for u,ab in enumerate((40,50)):
            for k in range(9):
                a(f"ds_read2st64_b32 v[{60+20*u+2*k}:{61+20*u+2*k}], v{ab+k} offset0:{off0} offset1:{off0+12}")
    expand(0)
    a("s_branch K1_exp2\nK1_exp1:")
    expand(24)
    a("K1_exp2:")
    for u in range(2):
        b=60+20*u
        a(f"s_waitcnt lgkmcnt({9*(1-u)})")
        for k in range(9): a(f"v_add_f32 v{b+2*k}, v{b+2*k}, v{b+2*k+1}")
        if u==1: a(f"v_cndmask_b32 v{b+16}, v{b+16}, 0, vcc")
        o=16+8*u
        for j in range(4):
            a(f"v_cvt_pk_bf16_f32 v{o+j}, v{b+4*j}, v{b+4*j+2}")
            a(f"v_cvt_pk_bf16_f32 v{o+4+j}, v{b+4*j+2}, v{b+4*j+4}")
        a(f"global_store_dwordx4 v2, v[{o}:{o+3}], s[14:15] offset:{2048*u}")
        a(f"v_add_u32 v3, {KR_COPY+2048*u}, v2")
        a(f"global_store_dwordx4 v3, v[{o+4}:{o+7}], s[14:15]")
    a(f"""
    v_and_b32 v4, 3, v1
    v_lshlrev_b32 v4, 4, v4
    v_bfe_u32 v5, v1, 2, 1
    v_mul_u32_u24 v5, {KR_COPY}, v5
    v_add3_u32 v4, v4, v5, s8
    v_add_u32 v4, 4096, v4
    v_mov_b32 v32, 0
    v_mov_b32 v33, 0
    v_mov_b32 v34, 0
    v_mov_b32 v35, 0
    v_cmp_gt_u32 vcc, 8, v1
    s_and_saveexec_b64 s[8:9], vcc
    s_cbranch_execz K1_kend
    global_store_dwordx4 v4, v[32:35], s[14:15]
    K1_kend:
    """)
    stamp(a,4); a("s_waitcnt vmcnt(0)") if STAMP else None
    stamp_out(a,0,6)
    a("K1_end:\ns_endpgm")

def kd(name, vgpr, sgpr=96, accum=None):
    accum = accum or ((vgpr+3)//4*4)
    return f""".p2align 6
.amdhsa_kernel {name}
  .amdhsa_next_free_vgpr {vgpr}
  .amdhsa_next_free_sgpr {sgpr}
  .amdhsa_accum_offset {accum}
  .amdhsa_group_segment_fixed_size 0
  .amdhsa_kernarg_size 128
  .amdhsa_user_sgpr_count 2
  .amdhsa_user_sgpr_kernarg_segment_ptr 1
  .amdhsa_system_sgpr_workgroup_id_x 1
.end_amdhsa_kernel
"""

KERNELS=[]
KERNELS.append(("k1_kernel",k1,256,768,K1_LDS,112))
try:
    import gen2
    gen2.register(KERNELS)
except ImportError:
    pass

def main(out):
    hdr=open(f"cdna_kernels/{NAME}.s.ref").read().split("; Override")[0]
    txt=hdr
    for (n,fn,g,b,l,v) in KERNELS: txt+=f"; @launch kernel={n} grid=({g},1,1) block=({b},1,1) lds={l}\n"
    txt+='.amdgcn_target "amdgcn-amd-amdhsa--gfx950"\n.text\n'
    for (n,fn,g,b,l,v) in KERNELS:
        a=Asm(); fn(a)
        txt+=f".globl {n}\n.p2align 8\n.type {n},@function\n"+a.finish()
        print(n,"instructions",len(a.L),"nops inserted",a.nops,file=sys.stderr)
    txt+='.section .rodata,"a"\n'
    for (n,fn,g,b,l,v) in KERNELS: txt+=kd(n,v)
    open(out,"w").write(txt)
if __name__=="__main__":
    main(sys.argv[1] if len(sys.argv)>1 else f"cdna_kernels/{NAME}.s")
```
